```python
import torch

def _softmax(x, axis=-1):
    return torch.softmax(x, dim=axis)
def _gelu(x):
    return torch.nn.functional.gelu(x, approximate="tanh")
def _silu(x):
    return torch.nn.functional.silu(x)
def _sigmoid(x):
    return torch.sigmoid(x)
def _layernorm(x, axis=-1, eps=1e-5):
    m = x.mean(dim=axis, keepdim=True)
    v = x.var(dim=axis, keepdim=True, unbiased=False)
    return (x - m) / torch.sqrt(v + eps)
def _scatter_add(tgt, idx, src, axis=0):
    return tgt.clone().index_add_(axis, idx, src)
def _segment_sum(src, seg, n):
    out = torch.zeros((n,) + src.shape[1:], dtype=src.dtype)
    return out.index_add_(0, seg, src)
def _pad(x, pw):
    flat = tuple(v for pair in reversed(pw) for v in pair)
    return torch.nn.functional.pad(x, flat)

kernel_name = 'standalone__fused_io_aware_attn__prompt'

def setup_inputs():

    _w = (lambda a: (lambda t: t.to(torch.bfloat16) if t.is_floating_point() else t)(torch.as_tensor(a)))
    B, H, S = 1, 32, 2048
    Dh = max(1, 576 // 32)
    return {
        "q": _w((lambda *s: torch.randn(*s, dtype=torch.bfloat16) * 0.8)(B, H, S, Dh)),
        "k": _w((lambda *s: torch.randn(*s, dtype=torch.bfloat16) * 0.8)(B, H, S, Dh)),
        "v": _w((lambda *s: torch.randn(*s, dtype=torch.bfloat16) * 0.05)(B, H, S, Dh)),
    }

def reference(q, k, v):
    scale = q.shape[-1] ** -0.5
    s = torch.einsum('bhqd,bhkd->bhqk', q, k) * scale
    p = _softmax(s, axis=-1)
    return torch.einsum('bhqk,bhkd->bhqd', p, v)
```

```python
R = dict(
    K1A=8, K2A=9, VE=10, VO=11, VS=12, QOFF=13,
    Q1=16, Q2=20, K2=22, K1a=24, K1b=28, V=32, P=48, O=56, S=88)
K1BASE=0; K2BASE=65536; VBASE=73728; ONES=147456

def rng(a,n): return f"v[{a}:{a+n-1}]" if n>1 else f"v{a}"

class Stream:
    def __init__(self):
        self.L=[]; self.lds=[]
        self.done=0
        self.vm=[]; self.vmdone=0
    def e(self,s): self.L.append("    "+s)
    def lab(self,s): self.L.append(s+":")
    def ldsop(self,s,tag):
        self.e(s); self.lds.append(tag)
    def need(self,tags,slack=None):
        last=-1
        for i,t in enumerate(self.lds):
            if t in tags: last=i
        assert last>=0, tags
        if last<self.done: return
        n=len(self.lds)-1-last
        if slack is not None: n=min(n,slack)
        n=min(n,15)
        self.e(f"s_waitcnt lgkmcnt({n})")
        self.done=len(self.lds)-n
    def vmop(self,s,tag):
        self.e(s); self.vm.append(tag)
    def vmneed(self,tags):
        last=-1
        for i,t in enumerate(self.vm):
            if t in tags: last=i
        assert last>=0, tags
        if last<self.vmdone: return
        n=len(self.vm)-1-last
        assert n<=63
        self.e(f"s_waitcnt vmcnt({n})")
        self.vmdone=len(self.vm)-n
    def text(self): return "\n".join(self.L)+"\n"

def Sreg(j,i): return R['S']+32*(j%2)+i
def Preg(G): return R['P']+4*(G%2)
def Vreg(g): return R['V']+4*g
def Oreg(g): return R['O']+16*(g%2)

def E(st,j,i):
    r=Sreg(j,i); st.e(f"v_exp_f32 v{r}, v{r}")
def C(st,G,k):
    j,g=divmod(G,4); r=Sreg(j,8*g+2*k)
    st.e(f"v_cvt_pk_bf16_f32 v{Preg(G)+k}, v{r}, v{r+1}")
def PV(st,G,first=False,slack=None):
    j,g=divmod(G,4)
    st.need({('V',j,g)},slack)
    o=Oreg(g); c="0" if first else rng(o,16)
    st.e(f"v_mfma_f32_32x32x16_bf16 {rng(o,16)}, {rng(Vreg(g),4)}, {rng(Preg(G),4)}, {c}")
def M2B(st,j,slack=None):
    st.need({('K2',j)},slack)
    st.e(f"v_mfma_f32_32x32x4_2b_bf16 {rng(Sreg(j,0),32)}, {rng(R['K2'],2)}, {rng(R['Q2'],2)}, 0")
def QK(st,j,t,slack=None):
    st.need({('K1',j,t)},slack)
    k=R['K1a'] if t==0 else R['K1b']; s=Sreg(j,16*t)
    st.e(f"v_mfma_f32_32x32x16_bf16 {rng(s,16)}, {rng(k,4)}, {rng(R['Q1'],4)}, {rng(s,16)}")
def rdK2(st,j,jm=None):
    jm=j if jm is None else jm
    st.ldsop(f"ds_read_b32 v{R['K2']}, v{R['K2A']} offset:{jm*256}",('K2',j))
def rdK1(st,j,t,jm=None):
    jm=j if jm is None else jm
    k=R['K1a'] if t==0 else R['K1b']
    st.ldsop(f"ds_read_b128 {rng(k,4)}, v{R['K1A']} offset:{(2*jm+t)*1024}",('K1',j,t))
def rdV(st,j,g,rho,NP):
    a=R['VE'] if g%2==0 else R['VO']
    off=(j%NP)*2304+(g//2)*1152+rho*576
    st.ldsop(f"ds_read_b64_tr_b16 {rng(Vreg(g)+2*rho,2)}, v{a} offset:{off}",('V',j,g))
def bumpV(st):
    st.e(f"v_add_u32 v{R['VE']}, v{R['VE']}, v{R['VS']}")
    st.e(f"v_add_u32 v{R['VO']}, v{R['VO']}, v{R['VS']}")

def group(st,G,pat,xmap,NP,npairs,jmod=None,hook=None,slack=None,firstG=0):
    j,g=divmod(G,4)
    for tok in pat:
        if tok[0]=='E': E(st,j,8*g+int(tok[1]))
        elif tok=='c3':
            if G>firstG: C(st,G-1,3)
        elif tok[0]=='C': C(st,G,int(tok[1]))
        elif tok=='PV':
            if G>firstG: PV(st,G-1,first=(G-1)<firstG+2 and firstG==0 and jmod is None,slack=slack)
        elif tok in('va','vb'):
            if G>firstG:
                pj,pg=divmod(G-1,4)
                if pj+1<npairs:
                    if tok=='va' and pg==0 and (pj+1)%NP==0: bumpV(st)
                    rdV(st,pj+1,pg,0 if tok=='va' else 1,NP)
        elif tok=='X':
            x=xmap.get(g)
            if x and j+1<npairs:
                if x=='M': M2B(st,j+1,slack)
                elif x=='A': QK(st,j+1,0,slack)
                elif x=='B': QK(st,j+1,1,slack)
        elif tok=='k':
            x=xmap.get(g)
            if x and j+2<npairs:
                jm=None if jmod is None else (j+2)%jmod
                if x=='M': rdK2(st,j+2,jm)
                elif x=='A': rdK1(st,j+2,0,jm)
                elif x=='B': rdK1(st,j+2,1,jm)
        elif tok=='H':
            if hook: hook(st,G)
        elif tok.startswith('nop'):
            st.e(f"s_nop {int(tok[3:])}")
        else: raise ValueError(tok)
```

```python
import sys, struct, math
from sched import *
import sched

NAME='standalone__fused_io_aware_attn__prompt'
KN=NAME+'_kernel'
def f2u(x): return struct.unpack('<I',struct.pack('<f',x))[0]
CSCALE=(18**-0.5)*math.log2(math.e)

DEF=dict(NP=2, pats=None, xmap={0:'M',1:'A',2:'B'}, slack=6, stamps=False, prio_switch=None, nofallback=False,
         force_fallback=False, dma_plan=None, barriers=None)

HEADER="""; Kernarg layout for this problem (48 bytes, ptrs only, base s[0:1]):
; @launch grid=(256,1,1) block=(512,1,1) lds=%(lds)d
;
.amdgcn_target "amdgcn-amd-amdhsa--gfx950"
.text
.globl %(kn)s
.p2align 8
.type %(kn)s,@function
%(kn)s:
"""
FOOTER="""
.section .rodata,"a"
.p2align 6
.amdhsa_kernel %(kn)s
  .amdhsa_next_free_vgpr %(nv)d
  .amdhsa_next_free_sgpr 96
  .amdhsa_accum_offset %(nv)d
  .amdhsa_group_segment_fixed_size 0
  .amdhsa_kernarg_size 48
  .amdhsa_user_sgpr_count 2
  .amdhsa_user_sgpr_kernarg_segment_ptr 1
  .amdhsa_system_sgpr_workgroup_id_x 1
  .amdhsa_float_denorm_mode_32 3
.end_amdhsa_kernel
"""
K1G,K2G,VG=152,153,154
MX,T0,T1,VE0,VO0,FK1,FK2=155,156,157,158,159,160,161
NV=164
SRD_K,SRD_V,SRD_Q,SRD_O=8,12,16,20
S_W=24; S_K1M,S_K1G,S_K2M,S_K2G,S_VM,S_VG=34,35,36,37,38,39
S_T=32; S_C=33
LDS_BYTES=ONES+8192

def dma(st,kind,s):
    if kind=='K1': m,g,cm,cg,op,v,srd=S_K1M,S_K1G,8192*s,9216*s,'buffer_load_dwordx4',K1G,SRD_K
    if kind=='K2': m,g,cm,cg,op,v,srd=S_K2M,S_K2G,2048*s,18432*s,'buffer_load_dword',K2G,SRD_K
    if kind=='V':  m,g,cm,cg,op,v,srd=S_VM,S_VG,8192*s,8192*s,'buffer_load_dwordx4',VG,SRD_V
    st.e(f"s_add_u32 m0, s{m}, {cm}")
    st.e(f"s_add_u32 s{S_T}, s{g}, {cg}")
    st.vmop(f"{op} v{v}, s[{srd}:{srd+3}], s{S_T} offen lds",(kind,s))

def barrier(st,tags):
    st.vmneed(set(tags))
    st.e("s_barrier")
    for t in st.vm[:st.vmdone]: st.landed.add(t)

def build(**kw):
    o=dict(DEF); o.update(kw)
    NP=o['NP']
    st=Stream(); st.landed=set()
    e=st.e
    e("s_cmp_ge_u32 s2, 256")
    e("s_cbranch_scc1 L_end")
    if o['stamps']:
        e("s_memtime s[60:61]")
    e("s_load_dwordx4 s[4:7], s[0:1], 0")
    e("s_load_dwordx4 s[28:31], s[0:1], 16")
    if o['stamps']:
        e("s_load_dwordx2 s[68:69], s[0:1], 40")
    e("s_mov_b32 s46, 0")
    e("v_lshrrev_b32 v1, 6, v0")
    e("v_and_b32 v2, 63, v0")
    e(f"v_readfirstlane_b32 s{S_W}, v1")
    e("s_and_b32 s25, s2, 7")
    e("s_lshl_b32 s25, s25, 2")
    e("s_bfe_u32 s26, s2, 0x20003")
    e("s_add_u32 s25, s25, s26")
    e("s_mul_i32 s27, s25, 73728")
    e("s_lshr_b32 s26, s2, 5")
    e("s_mul_i32 s26, s26, 9216")
    e(f"s_mul_i32 s{S_K1G}, s{S_W}, 1152")
    e(f"s_add_u32 s26, s26, s{S_K1G}")
    e("v_and_b32 v3, 31, v2")
    e("v_lshrrev_b32 v4, 5, v2")
    e(f"v_mul_u32_u24 v{R['QOFF']}, 36, v3")
    e(f"v_add_u32 v{R['QOFF']}, s26, v{R['QOFF']}")
    e("v_lshlrev_b32 v5, 4, v4")
    e(f"v_add_u32 v6, v{R['QOFF']}, v5")
    e("v_and_b32 v7, 15, v2")
    e("v_lshlrev_b32 v7, 1, v7")
    e("v_bfe_u32 v14, v2, 4, 1")
    e("v_add_u32 v7, v7, v14")
    e("v_mul_u32_u24 v7, 36, v7")
    e(f"v_add_u32 v{K1G}, v7, v5")
    e("v_mul_u32_u24 v15, 0x480, v4")
    e("v_add3_u32 v%d, v7, v15, 32"%K2G)
    e(f"v_lshlrev_b32 v{VG}, 4, v2")
    e(f"s_lshl_b32 s{S_K1M}, s{S_W}, 10")
    e(f"s_lshl_b32 s{S_K2M}, s{S_W}, 8")
    e(f"s_add_u32 s{S_K2M}, s{S_K2M}, {K2BASE}")
    e(f"s_mul_i32 s{S_K2G}, s{S_W}, 2304")
    e(f"s_add_u32 s{S_VM}, s{S_K1M}, {VBASE}")
    e(f"s_mov_b32 s{S_VG}, s{S_K1M}")
    e("s_waitcnt lgkmcnt(0)")
    for srd,lo in ((SRD_Q,4),(SRD_K,6),(SRD_V,28),(SRD_O,30)):
        e(f"s_add_u32 s{srd}, s{lo}, s27")
        e(f"s_addc_u32 s{srd+1}, s{lo+1}, 0")
        e(f"s_mov_b32 s{srd+2}, 73728")
        e(f"s_mov_b32 s{srd+3}, 0x20000")
    Q1,Q2=R['Q1'],R['Q2']
    st.vmop(f"buffer_load_dwordx4 {rng(Q1,4)}, v6, s[{SRD_Q}:{SRD_Q+3}], 0 offen",('Q',0))
    st.vmop(f"buffer_load_dword v{Q2}, v{R['QOFF']}, s[{SRD_Q}:{SRD_Q+3}], 0 offen offset:32",('Q',1))
    for k,s in (('K2',0),('K1',0),('V',0),('K1',1),('V',1)): dma(st,k,s)
    e("v_mov_b32 v24, 0x3f803f80")
    e("v_mov_b32 v25, v24"); e("v_mov_b32 v26, v24"); e("v_mov_b32 v27, v24")
    e("v_lshlrev_b32 v1, 4, v0")
    e(f"v_add_u32 v1, {ONES}, v1")
    e("ds_write_b128 v1, v[24:27]")
    e(f"v_lshlrev_b32 v{R['K1A']}, 4, v2")
    e(f"v_lshlrev_b32 v{R['K2A']}, 2, v2")
    e(f"v_add_u32 v{R['K2A']}, {K2BASE}, v{R['K2A']}")
    e("v_bfe_u32 v3, v2, 2, 2")
    e("v_and_b32 v5, 3, v2")
    e("v_lshlrev_b32 v6, 2, v4")
    e("v_add_u32 v3, v3, v6")
    e("v_mul_u32_u24 v3, 72, v3")
    e(f"v_add_u32 v3, {VBASE}, v3")
    e("v_lshlrev_b32 v6, 3, v5")
    e(f"v_add_u32 v{R['VE']}, v3, v6")
    e(f"v_add_u32 v{R['VO']}, 40, v{R['VE']}")
    e("v_add_u32 v3, 32, v3")
    e("v_cmp_eq_u32 vcc, 1, v14")
    e("v_cmp_ne_u32 s[40:41], 0, v5")
    e("v_lshlrev_b32 v6, 5, v4")
    e(f"v_add_u32 v7, {ONES+40}, v6")
    e(f"v_cndmask_b32 v{R['VE']}, v{R['VE']}, v3, vcc")
    e(f"v_cndmask_b32 v{R['VO']}, v{R['VO']}, v3, vcc")
    e("s_and_b64 vcc, vcc, s[40:41]")
    e(f"v_add_u32 v6, {ONES+80}, v6")
    e(f"v_mov_b32 v{R['VS']}, {NP*2304}")
    e("v_mov_b32 v3, 0")
    e(f"v_cndmask_b32 v{R['VE']}, v{R['VE']}, v7, vcc")
    e(f"v_cndmask_b32 v{R['VO']}, v{R['VO']}, v6, vcc")
    e(f"v_cndmask_b32 v{R['VS']}, v{R['VS']}, v3, vcc")
    e(f"v_mov_b32 v{VE0}, v{R['VE']}")
    e(f"v_mov_b32 v{VO0}, v{R['VO']}")
    e(f"v_mov_b32 v{Q2+1}, 0")
    e(f"v_mov_b32 v{R['K2']+1}, 0")
    e(f"s_mov_b32 s{S_C}, 0x{f2u(CSCALE):08x}")
    st.vmneed({('Q',0),('Q',1)})
    for i in range(5):
        q=Q1+i if i<4 else Q2
        e(f"v_lshlrev_b32 v1, 16, v{q}")
        e(f"v_and_b32 v3, 0xffff0000, v{q}")
        e(f"v_mul_f32 v1, s{S_C}, v1")
        e(f"v_mul_f32 v3, s{S_C}, v3")
        e(f"v_cvt_pk_bf16_f32 v{q}, v1, v3")
    e("s_waitcnt lgkmcnt(0)")
    barrier(st,[('V',0)])
    if o['stamps']:
        e("s_memtime s[62:63]"); e("s_waitcnt lgkmcnt(0)")
    def chk(tags):
        for t in tags: assert t in st.landed, (t,len(st.L))
    _k2,_k1,_v=sched.rdK2,sched.rdK1,sched.rdV
    def rdK2c(s,j,jm=None): chk([('K2',j//8)]); _k2(s,j,jm)
    def rdK1c(s,j,t,jm=None): chk([('K1',(2*j+t)//8)]); _k1(s,j,t,jm)
    def rdVc(s,j,g,rho,NPx):
        a=2304*j+1152*(g//2); chk([('V',x) for x in range(a//8192,(a+1151)//8192+1)]); _v(s,j,g,rho,NPx)
    sched.rdK2,sched.rdK1,sched.rdV=rdK2c,rdK1c,rdVc
    rdK2c(st,0); rdK1c(st,0,0); rdK1c(st,0,1)
    for g in range(4):
        rdVc(st,0,g,0,NP); rdVc(st,0,g,1,NP)
    M2B(st,0)
    rdK2c(st,1)
    e("s_nop 15"); e("s_nop 1")
    QK(st,0,0); rdK1c(st,1,0)
    QK(st,0,1); rdK1c(st,1,1)
    e("s_nop 10")
    plan=o['dma_plan'] or {0:[('K1',2)],2:[('V',2)],4:[('K2',1)],5:[('K1',3)],6:[('V',3)],
                           8:[('K1',4)],10:[('V',4)],12:[('K1',5)],14:[('V',5)],16:[('K2',2)],18:[('K1',6)],20:[('V',6)],
                           22:[('K1',7)],24:[('V',7)],26:[('K2',3)],28:[('V',8)]}
    bars=o['barriers'] or {2:[('K1',1),('V',1)],6:[('K1',3),('V',3),('K2',1)],13:[('V',8)]}
    def hook(s,G):
        for k,x in plan.get(G,[]): dma(s,k,x)
    pats=o['pats']
    for G in range(128):
        j,g=divmod(G,4)
        if g==0 and j in bars: barrier(st,bars[j])
        if g==0 and o['prio_switch'] is not None:
            if j==o['prio_switch'][0]:
                e(f"s_cmp_lt_u32 s{S_W}, 4"); e(f"s_cbranch_scc1 L_np{j}"); e("s_setprio 1"); st.lab(f"L_np{j}")
            if j==o['prio_switch'][1]: e("s_setprio 0")
        group(st,G,pats[g],o['xmap'],NP,32,hook=hook,slack=o['slack'])
    C(st,127,3); e("s_nop 1"); PV(st,127)
    sched.rdK2,sched.rdK1,sched.rdV=_k2,_k1,_v
    e("s_nop 11")
    if o['stamps']:
        e("s_memtime s[64:65]"); e("s_waitcnt lgkmcnt(0)")
    if o['force_fallback']: e("s_branch L_fallback")
    st.lab("L_final")
    E_,D_=R['O'],R['O']+16
    Ev=lambda i:f"v{E_+i}"; Dv=lambda i:f"v{D_+i}"
    Tv=lambda i:f"v{88+i}"
    L_,RL=100,101
    e(f"v_add_f32 v{L_}, {Ev(12)}, {Dv(12)}")
    e(f"v_permlane32_swap_b32 {Dv(2)}, {Dv(6)}")
    e(f"v_permlane32_swap_b32 {Dv(3)}, {Dv(7)}")
    e(f"v_rcp_f32 v{RL}, v{L_}")
    e(f"v_permlane32_swap_b32 {Dv(10)}, {Dv(2)}")
    e(f"v_permlane32_swap_b32 {Dv(11)}, {Dv(3)}")
    e("s_mov_b32 s44, 0"); e("s_mov_b32 s45, -1")
    e(f"v_permlane32_swap_b32 {Dv(6)}, {Dv(2)}")
    e(f"v_permlane32_swap_b32 {Dv(7)}, {Dv(3)}")
    e(f"v_add_f32 {Tv(0)}, {Ev(0)}, {Dv(10)}")
    e(f"v_add_f32 {Tv(1)}, {Ev(1)}, {Dv(11)}")
    e(f"v_add_f32 {Tv(2)}, {Ev(2)}, {Dv(0)}")
    e(f"v_add_f32 {Tv(3)}, {Ev(3)}, {Dv(1)}")
    e(f"v_cndmask_b32 {Dv(6)}, {Dv(6)}, {Dv(2)}, s[44:45]")
    e(f"v_cndmask_b32 {Dv(7)}, {Dv(7)}, {Dv(3)}, s[44:45]")
    e(f"v_add_f32 {Tv(6)}, {Ev(6)}, {Dv(4)}")
    e(f"v_add_f32 {Tv(7)}, {Ev(7)}, {Dv(5)}")
    e(f"v_add_f32 {Tv(8)}, {Ev(8)}, {Dv(2)}")
    e(f"v_add_f32 {Tv(9)}, {Ev(9)}, {Dv(3)}")
    e(f"v_add_f32 {Tv(4)}, {Ev(4)}, {Dv(6)}")
    e(f"v_add_f32 {Tv(5)}, {Ev(5)}, {Dv(7)}")
    for i in (0,1,2,3,6,7,8,9,4,5): e(f"v_mul_f32 {Tv(i)}, {Tv(i)}, v{RL}")
    if not o['nofallback']:
        e("s_cmp_eq_u32 s46, 1")
        e("s_cbranch_scc1 L_store")
        e(f"v_mul_f32 v102, 0, {Tv(0)}")
        for i in range(1,10): e(f"v_fma_f32 v102, {Tv(i)}, 0, v102")
        e(f"v_cmp_le_f32 vcc, 1.0, v{L_}")
        e(f"s_mov_b32 s47, 0x{f2u(2.0**100):08x}")
        e(f"v_cmp_ge_f32 s[40:41], s47, v{L_}")
        e("v_cmp_o_f32 s[42:43], v102, v102")
        e("s_nop 1")
        e("s_and_b64 vcc, vcc, s[40:41]")
        e("s_and_b64 vcc, vcc, s[42:43]")
        e("s_andn2_b64 s[40:41], exec, vcc")
        e("s_cbranch_scc1 L_fallback")
    st.lab("L_store")
    for i in range(5): e(f"v_cvt_pk_bf16_f32 v{104+i}, {Tv(2*i)}, {Tv(2*i+1)}")
    e(f"v_bfe_u32 v110, v0, 5, 1")
    e(f"v_lshlrev_b32 v110, 3, v110")
    e(f"v_add_u32 v110, v110, v{R['QOFF']}")
    e(f"buffer_store_dwordx2 v[104:105], v110, s[{SRD_O}:{SRD_O+3}], 0 offen")
    e(f"buffer_store_dwordx2 v[106:107], v110, s[{SRD_O}:{SRD_O+3}], 0 offen offset:16")
    e("s_mov_b32 exec_hi, 0")
    e(f"buffer_store_dword v108, v{R['QOFF']}, s[{SRD_O}:{SRD_O+3}], 0 offen offset:32")
    if o['stamps']:
        e("s_mov_b64 exec, -1")
        e("s_waitcnt vmcnt(0)")
        e("s_memtime s[66:67]"); e("s_waitcnt lgkmcnt(0)")
        e("s_mov_b32 s72, s68"); e("s_mov_b32 s73, s69"); e("s_mov_b32 s74, 0x100000"); e("s_mov_b32 s75, 0x20000")
        e("s_lshl_b32 s70, s2, 3"); e(f"s_add_u32 s70, s70, s{S_W}"); e("s_lshl_b32 s70, s70, 5")
        e("v_mov_b32 v1, s70")
        e("v_mov_b32 v4, s60"); e("v_mov_b32 v5, s62"); e("v_mov_b32 v6, s64"); e("v_mov_b32 v7, s66")
        e("s_mov_b64 exec, 1")
        e("buffer_store_dwordx4 v[4:7], v1, s[72:75], 0 offen")
    st.lab("L_end")
    e("s_endpgm")
    if not o['nofallback']:
        st.lab("L_fallback")
        S0=R['S']; PB=S0+32
        e("s_mov_b32 s46, 1")
        e(f"v_mov_b32 v{FK1}, v{R['K1A']}")
        e(f"v_mov_b32 v{FK2}, v{R['K2A']}")
        e(f"v_mov_b32 v{R['VE']}, v{VE0}")
        e(f"v_mov_b32 v{R['VO']}, v{VO0}")
        e(f"v_lshrrev_b32 v14, {int(math.log2(NP))}, v{R['VS']}")
        for i in range(32): e(f"v_mov_b32 v{R['O']+i}, 0")
        e(f"v_mov_b32 v{MX}, 0xff7fffff")
        e("s_mov_b32 s47, 32")
        st.lab("L_fb_loop")
        e(f"ds_read_b32 v{R['K2']}, v{FK2}")
        e(f"ds_read_b128 {rng(R['K1a'],4)}, v{FK1}")
        e(f"ds_read_b128 {rng(R['K1b'],4)}, v{FK1} offset:1024")
        for g in range(4):
            for rho in range(2):
                a=R['VE'] if g%2==0 else R['VO']
                e(f"ds_read_b64_tr_b16 {rng(Vreg(g)+2*rho,2)}, v{a} offset:{(g//2)*1152+rho*576}")
        e("s_waitcnt lgkmcnt(0)")
        e(f"v_mfma_f32_32x32x4_2b_bf16 {rng(S0,32)}, {rng(R['K2'],2)}, {rng(Q2,2)}, 0")
        e("s_nop 15"); e("s_nop 3")
        e(f"v_mfma_f32_32x32x16_bf16 {rng(S0,16)}, {rng(R['K1a'],4)}, {rng(Q1,4)}, {rng(S0,16)}")
        e(f"v_mfma_f32_32x32x16_bf16 {rng(S0+16,16)}, {rng(R['K1b'],4)}, {rng(Q1,4)}, {rng(S0+16,16)}")
        e("s_nop 15")
        e(f"v_max3_f32 v{T0}, v{S0}, v{S0+1}, v{MX}")
        for i in range(1,16): e(f"v_max3_f32 v{T0}, v{S0+2*i}, v{S0+2*i+1}, v{T0}")
        e(f"v_mov_b32 v{T1}, v{T0}")
        e("s_nop 1")
        e(f"v_permlane32_swap_b32 v{T0}, v{T1}")
        e("s_nop 1")
        e(f"v_max_f32 v{T0}, v{T0}, v{T1}")
        e(f"v_sub_f32 v{T1}, v{MX}, v{T0}")
        e(f"v_exp_f32 v{T1}, v{T1}")
        e(f"v_mov_b32 v{MX}, v{T0}")
        for i in range(32): e(f"v_mul_f32 v{R['O']+i}, v{R['O']+i}, v{T1}")
        for i in range(32): e(f"v_sub_f32 v{S0+i}, v{S0+i}, v{MX}")
        for i in range(32): e(f"v_exp_f32 v{S0+i}, v{S0+i}")
        e("s_nop 0")
        for i in range(16): e(f"v_cvt_pk_bf16_f32 v{PB+i}, v{S0+2*i}, v{S0+2*i+1}")
        e("s_nop 1")
        for g in range(4):
            oo=Oreg(g)
            e(f"v_mfma_f32_32x32x16_bf16 {rng(oo,16)}, {rng(Vreg(g),4)}, {rng(PB+4*g,4)}, {rng(oo,16)}")
        e(f"v_add_u32 v{FK1}, 0x800, v{FK1}")
        e(f"v_add_u32 v{FK2}, 0x100, v{FK2}")
        e(f"v_add_u32 v{R['VE']}, v{R['VE']}, v14")
        e(f"v_add_u32 v{R['VO']}, v{R['VO']}, v14")
        e("s_nop 15")
        e("s_sub_u32 s47, s47, 1")
        e("s_cmp_lg_u32 s47, 0")
        e("s_cbranch_scc1 L_fb_loop")
        e("s_branch L_final")
    return st

PATS={
 'd':[['E0','E1','c3','E2','E3','PV','va','vb','C0','E4','E5','C1','X','k','H','E6','E7','C2']]*4,
 'b':[['E0','c3','E1','E2','PV','va','E3','vb','C0','E4','E5','X','k','H','C1','E6','E7','C2']]*4,
}
def write(path,**kw):
    kw.setdefault('pats',PATS['d'])
    st=build(**kw)
    d=dict(kn=KN,lds=LDS_BYTES,nv=NV)
    open(path,'w').write(HEADER%d+st.text()+FOOTER%d)
if __name__=="__main__":
    import argparse
    ap=argparse.ArgumentParser()
    ap.add_argument('out'); ap.add_argument('--opts',default='{}')
    a=ap.parse_args()
    kw=eval(a.opts)
    if isinstance(kw.get('pats'),str): kw['pats']=PATS[kw['pats']]
    write(a.out,**kw)
```

```python
import sys, struct, math
from sched import *
import sched

NAME='standalone__fused_io_aware_attn__prompt'
KN=NAME+'_kernel'
def f2u(x): return struct.unpack('<I',struct.pack('<f',x))[0]
CSCALE=(18**-0.5)*math.log2(math.e)

DEF=dict(NP=2, pats=None, xmap={0:'M',1:'A',2:'B'}, slack=6, stamps=False, prio_switch=None, nofallback=False,
         force_fallback=False, dma_plan=None, barriers=None, clk=None, dbg=False)

HEADER="""; Kernarg layout for this problem (48 bytes, ptrs only, base s[0:1]):
; @launch grid=(256,1,1) block=(512,1,1) lds=%(lds)d
;
.amdgcn_target "amdgcn-amd-amdhsa--gfx950"
.text
.globl %(kn)s
.p2align 8
.type %(kn)s,@function
%(kn)s:
"""
FOOTER="""
.section .rodata,"a"
.p2align 6
.amdhsa_kernel %(kn)s
  .amdhsa_next_free_vgpr %(nv)d
  .amdhsa_next_free_sgpr 96
  .amdhsa_accum_offset %(nv)d
  .amdhsa_group_segment_fixed_size 0
  .amdhsa_kernarg_size 48
  .amdhsa_user_sgpr_count 2
  .amdhsa_user_sgpr_kernarg_segment_ptr 1
  .amdhsa_system_sgpr_workgroup_id_x 1
  .amdhsa_float_denorm_mode_32 3
.end_amdhsa_kernel
"""
K1G,K2G,VG=152,153,154
MX,T0,T1,VE0,VO0,FK1,FK2=155,156,157,158,159,160,161
NV=164
SRD_K,SRD_V,SRD_Q,SRD_O=8,12,16,20
S_W=24; S_K1M,S_K1G,S_K2M,S_K2G,S_VM,S_VG=34,35,36,37,38,39
S_T=32; S_C=33
LDS_BYTES=ONES+8192

def dma(st,kind,s):
    if kind=='K1': m,g,cm,cg,op,v,srd=S_K1M,S_K1G,8192*s,9216*s,'buffer_load_dwordx4',K1G,SRD_K
    if kind=='K2': m,g,cm,cg,op,v,srd=S_K2M,S_K2G,2048*s,18432*s,'buffer_load_dword',K2G,SRD_K
    if kind=='V':  m,g,cm,cg,op,v,srd=S_VM,S_VG,8192*s,8192*s,'buffer_load_dwordx4',VG,SRD_V
    st.e(f"s_add_u32 m0, s{m}, {cm}")
    st.e(f"s_add_u32 s{S_T}, s{g}, {cg}")
    st.vmop(f"{op} v{v}, s[{srd}:{srd+3}], s{S_T} offen lds",(kind,s))

def barrier(st,tags):
    st.vmneed(set(tags))
    st.e("s_barrier")
    for t in st.vm[:st.vmdone]: st.landed.add(t)

def build(**kw):
    o=dict(DEF); o.update(kw)
    NP=o['NP']
    st=Stream(); st.landed=set()
    e=st.e
    e("s_cmp_ge_u32 s2, 256")
    e("s_cbranch_scc1 L_end")
    if o['stamps']:
        e("s_memtime s[60:61]")
        e("s_memrealtime s[76:77]")
    e("s_load_dwordx4 s[4:7], s[0:1], 0")
    e("s_load_dwordx4 s[28:31], s[0:1], 16")
    if o['stamps']:
        e("s_load_dwordx2 s[68:69], s[0:1], %d"%(32 if o['dbg'] else 40))
    e("s_mov_b32 s46, 0")
    e("v_lshrrev_b32 v1, 6, v0")
    e("v_and_b32 v2, 63, v0")
    e(f"v_readfirstlane_b32 s{S_W}, v1")
    e("s_and_b32 s25, s2, 7")
    e("s_lshl_b32 s25, s25, 2")
    e("s_bfe_u32 s26, s2, 0x20003")
    e("s_add_u32 s25, s25, s26")
    e("s_mul_i32 s27, s25, 73728")
    e("s_lshr_b32 s26, s2, 5")
    e("s_mul_i32 s26, s26, 9216")
    e(f"s_mul_i32 s{S_K1G}, s{S_W}, 1152")
    e(f"s_add_u32 s26, s26, s{S_K1G}")
    e("v_and_b32 v3, 31, v2")
    e("v_lshrrev_b32 v4, 5, v2")
    e(f"v_mul_u32_u24 v{R['QOFF']}, 36, v3")
    e(f"v_add_u32 v{R['QOFF']}, s26, v{R['QOFF']}")
    e("v_lshlrev_b32 v5, 4, v4")
    e(f"v_add_u32 v6, v{R['QOFF']}, v5")
    e("v_and_b32 v7, 15, v2")
    e("v_lshlrev_b32 v7, 1, v7")
    e("v_bfe_u32 v14, v2, 4, 1")
    e("v_add_u32 v7, v7, v14")
    e("v_mul_u32_u24 v7, 36, v7")
    e(f"v_add_u32 v{K1G}, v7, v5")
    e("v_mul_u32_u24 v15, 0x480, v4")
    e("v_add3_u32 v%d, v7, v15, 32"%K2G)
    e(f"v_lshlrev_b32 v{VG}, 4, v2")
    e(f"s_lshl_b32 s{S_K1M}, s{S_W}, 10")
    e(f"s_lshl_b32 s{S_K2M}, s{S_W}, 8")
    e(f"s_add_u32 s{S_K2M}, s{S_K2M}, {K2BASE}")
    e(f"s_mul_i32 s{S_K2G}, s{S_W}, 2304")
    e(f"s_add_u32 s{S_VM}, s{S_K1M}, {VBASE}")
    e(f"s_mov_b32 s{S_VG}, s{S_K1M}")
    e("s_waitcnt lgkmcnt(0)")
    if o['dbg']: e("s_memtime s[48:49]")
    for srd,lo in ((SRD_Q,4),(SRD_K,6),(SRD_V,28),(SRD_O,30)):
        e(f"s_add_u32 s{srd}, s{lo}, s27")
        e(f"s_addc_u32 s{srd+1}, s{lo+1}, 0")
        e(f"s_mov_b32 s{srd+2}, 73728")
        e(f"s_mov_b32 s{srd+3}, 0x20000")
    Q1,Q2=R['Q1'],R['Q2']
    st.vmop(f"buffer_load_dwordx4 {rng(Q1,4)}, v6, s[{SRD_Q}:{SRD_Q+3}], 0 offen",('Q',0))
    st.vmop(f"buffer_load_dword v{Q2}, v{R['QOFF']}, s[{SRD_Q}:{SRD_Q+3}], 0 offen offset:32",('Q',1))
    for k,s in (('K2',0),('K1',0),('V',0),('K1',1),('V',1)): dma(st,k,s)
    e("v_mov_b32 v24, 0x3f803f80")
    e("v_mov_b32 v25, v24"); e("v_mov_b32 v26, v24"); e("v_mov_b32 v27, v24")
    e("v_lshlrev_b32 v1, 4, v0")
    e(f"v_add_u32 v1, {ONES}, v1")
    e("ds_write_b128 v1, v[24:27]")
    e(f"v_lshlrev_b32 v{R['K1A']}, 4, v2")
    e(f"v_lshlrev_b32 v{R['K2A']}, 2, v2")
    e(f"v_add_u32 v{R['K2A']}, {K2BASE}, v{R['K2A']}")
    e("v_bfe_u32 v3, v2, 2, 2")
    e("v_and_b32 v5, 3, v2")
    e("v_lshlrev_b32 v6, 2, v4")
    e("v_add_u32 v3, v3, v6")
    e("v_mul_u32_u24 v3, 72, v3")
    e(f"v_add_u32 v3, {VBASE}, v3")
    e("v_lshlrev_b32 v6, 3, v5")
    e(f"v_add_u32 v{R['VE']}, v3, v6")
    e(f"v_add_u32 v{R['VO']}, 40, v{R['VE']}")
    e("v_add_u32 v3, 32, v3")
    e("v_cmp_eq_u32 vcc, 1, v14")
    e("v_cmp_ne_u32 s[40:41], 0, v5")
    e("v_lshlrev_b32 v6, 5, v4")
    e(f"v_add_u32 v7, {ONES+40}, v6")
    e(f"v_cndmask_b32 v{R['VE']}, v{R['VE']}, v3, vcc")
    e(f"v_cndmask_b32 v{R['VO']}, v{R['VO']}, v3, vcc")
    e("s_and_b64 vcc, vcc, s[40:41]")
    e(f"v_add_u32 v6, {ONES+80}, v6")
    e(f"v_mov_b32 v{R['VS']}, {NP*2304}")
    e("v_mov_b32 v3, 0")
    e(f"v_cndmask_b32 v{R['VE']}, v{R['VE']}, v7, vcc")
    e(f"v_cndmask_b32 v{R['VO']}, v{R['VO']}, v6, vcc")
    e(f"v_cndmask_b32 v{R['VS']}, v{R['VS']}, v3, vcc")
    e(f"v_mov_b32 v{VE0}, v{R['VE']}")
    e(f"v_mov_b32 v{VO0}, v{R['VO']}")
    e(f"v_mov_b32 v{Q2+1}, 0")
    e(f"v_mov_b32 v{R['K2']+1}, 0")
    e(f"s_mov_b32 s{S_C}, 0x{f2u(CSCALE):08x}")
    st.vmneed({('Q',0),('Q',1)})
    if o['dbg']: e("s_memtime s[52:53]")
    for i in range(5):
        q=Q1+i if i<4 else Q2
        e(f"v_lshlrev_b32 v1, 16, v{q}")
        e(f"v_and_b32 v3, 0xffff0000, v{q}")
        e(f"v_mul_f32 v1, s{S_C}, v1")
        e(f"v_mul_f32 v3, s{S_C}, v3")
        e(f"v_cvt_pk_bf16_f32 v{q}, v1, v3")
    e("s_waitcnt lgkmcnt(0)")
    barrier(st,[('V',0)])
    if o['stamps']:
        e("s_memtime s[62:63]"); e("s_waitcnt lgkmcnt(0)")
    def chk(tags):
        for t in tags: assert t in st.landed, (t,len(st.L))
    _k2,_k1,_v=sched.rdK2,sched.rdK1,sched.rdV
    def rdK2c(s,j,jm=None): chk([('K2',j//8)]); _k2(s,j,jm)
    def rdK1c(s,j,t,jm=None): chk([('K1',(2*j+t)//8)]); _k1(s,j,t,jm)
    def rdVc(s,j,g,rho,NPx):
        a=2304*j+1152*(g//2); chk([('V',x) for x in range(a//8192,(a+1151)//8192+1)]); _v(s,j,g,rho,NPx)
    sched.rdK2,sched.rdK1,sched.rdV=rdK2c,rdK1c,rdVc
    rdK2c(st,0); rdK1c(st,0,0); rdK1c(st,0,1)
    for g in range(4):
        rdVc(st,0,g,0,NP); rdVc(st,0,g,1,NP)
    M2B(st,0)
    rdK2c(st,1)
    e("s_nop 15"); e("s_nop 1")
    QK(st,0,0); rdK1c(st,1,0)
    QK(st,0,1); rdK1c(st,1,1)
    e("s_nop 10")
    plan=o['dma_plan'] or {0:[('K1',2)],2:[('V',2)],4:[('K2',1)],5:[('K1',3)],6:[('V',3)],
                           8:[('K1',4)],10:[('V',4)],12:[('K1',5)],14:[('V',5)],16:[('K2',2)],18:[('K1',6)],20:[('V',6)],
                           22:[('K1',7)],24:[('V',7)],26:[('K2',3)],28:[('V',8)]}
    bars=o['barriers'] or {2:[('K1',1),('V',1)],6:[('K1',3),('V',3),('K2',1)],13:[('V',8)]}
    def hook(s,G):
        for k,x in plan.get(G,[]): dma(s,k,x)
    pats=o['pats']
    clkfree=[48,52,56,80,84,88,92]; clkregs=[]
    def clkstamp():
        r=clkfree.pop(0); clkregs.append(r)
        e("s_waitcnt lgkmcnt(0)"); st.done=len(st.lds)
        e(f"s_memtime s[{r}:{r+1}]"); e(f"s_memrealtime s[{r+2}:{r+3}]"); e("s_waitcnt lgkmcnt(0)")
    for G in range(128):
        j,g=divmod(G,4)
        if g==0 and o['clk'] and j in o['clk']: clkstamp()
        if g==0 and j in bars: barrier(st,bars[j])
        if g==0 and o['prio_switch'] is not None:
            if j==o['prio_switch'][0]:
                e(f"s_cmp_lt_u32 s{S_W}, 4"); e(f"s_cbranch_scc1 L_np{j}"); e("s_setprio 1"); st.lab(f"L_np{j}")
            if j==o['prio_switch'][1]: e("s_setprio 0")
        group(st,G,pats[g],o['xmap'],NP,32,hook=hook,slack=o['slack'])
    C(st,127,3); e("s_nop 1"); PV(st,127)
    sched.rdK2,sched.rdK1,sched.rdV=_k2,_k1,_v
    e("s_nop 11")
    if o['stamps']:
        e("s_memtime s[64:65]"); e("s_waitcnt lgkmcnt(0)")
    if o['clk'] and 32 in o['clk']: clkstamp()
    if o['force_fallback']: e("s_branch L_fallback")
    st.lab("L_final")
    E_,D_=R['O'],R['O']+16
    Ev=lambda i:f"v{E_+i}"; Dv=lambda i:f"v{D_+i}"
    Tv=lambda i:f"v{88+i}"
    L_,RL=100,101
    e(f"v_add_f32 v{L_}, {Ev(12)}, {Dv(12)}")
    e(f"v_permlane32_swap_b32 {Dv(2)}, {Dv(6)}")
    e(f"v_permlane32_swap_b32 {Dv(3)}, {Dv(7)}")
    e(f"v_rcp_f32 v{RL}, v{L_}")
    e(f"v_permlane32_swap_b32 {Dv(10)}, {Dv(2)}")
    e(f"v_permlane32_swap_b32 {Dv(11)}, {Dv(3)}")
    e("s_mov_b32 s44, 0"); e("s_mov_b32 s45, -1")
    e(f"v_permlane32_swap_b32 {Dv(6)}, {Dv(2)}")
    e(f"v_permlane32_swap_b32 {Dv(7)}, {Dv(3)}")
    e(f"v_add_f32 {Tv(0)}, {Ev(0)}, {Dv(10)}")
    e(f"v_add_f32 {Tv(1)}, {Ev(1)}, {Dv(11)}")
    e(f"v_add_f32 {Tv(2)}, {Ev(2)}, {Dv(0)}")
    e(f"v_add_f32 {Tv(3)}, {Ev(3)}, {Dv(1)}")
    e(f"v_cndmask_b32 {Dv(6)}, {Dv(6)}, {Dv(2)}, s[44:45]")
    e(f"v_cndmask_b32 {Dv(7)}, {Dv(7)}, {Dv(3)}, s[44:45]")
    e(f"v_add_f32 {Tv(6)}, {Ev(6)}, {Dv(4)}")
    e(f"v_add_f32 {Tv(7)}, {Ev(7)}, {Dv(5)}")
    e(f"v_add_f32 {Tv(8)}, {Ev(8)}, {Dv(2)}")
    e(f"v_add_f32 {Tv(9)}, {Ev(9)}, {Dv(3)}")
    e(f"v_add_f32 {Tv(4)}, {Ev(4)}, {Dv(6)}")
    e(f"v_add_f32 {Tv(5)}, {Ev(5)}, {Dv(7)}")
    for i in (0,1,2,3,6,7,8,9,4,5): e(f"v_mul_f32 {Tv(i)}, {Tv(i)}, v{RL}")
    if not o['nofallback']:
        e("s_cmp_eq_u32 s46, 1")
        e("s_cbranch_scc1 L_store")
        e(f"v_mul_f32 v102, 0, {Tv(0)}")
        for i in range(1,10): e(f"v_fma_f32 v102, {Tv(i)}, 0, v102")
        e(f"v_cmp_le_f32 vcc, 1.0, v{L_}")
        e(f"s_mov_b32 s47, 0x{f2u(2.0**100):08x}")
        e(f"v_cmp_ge_f32 s[40:41], s47, v{L_}")
        e("v_cmp_o_f32 s[42:43], v102, v102")
        e("s_nop 1")
        e("s_and_b64 vcc, vcc, s[40:41]")
        e("s_and_b64 vcc, vcc, s[42:43]")
        e("s_andn2_b64 s[40:41], exec, vcc")
        e("s_cbranch_scc1 L_fallback")
    st.lab("L_store")
    if o['clk'] and 33 in o['clk']: clkstamp()
    for i in range(5): e(f"v_cvt_pk_bf16_f32 v{104+i}, {Tv(2*i)}, {Tv(2*i+1)}")
    e(f"v_bfe_u32 v110, v0, 5, 1")
    e(f"v_lshlrev_b32 v110, 3, v110")
    e(f"v_add_u32 v110, v110, v{R['QOFF']}")
    e(f"buffer_store_dwordx2 v[104:105], v110, s[{SRD_O}:{SRD_O+3}], 0 offen")
    e(f"buffer_store_dwordx2 v[106:107], v110, s[{SRD_O}:{SRD_O+3}], 0 offen offset:16")
    e("s_mov_b32 exec_hi, 0")
    e(f"buffer_store_dword v108, v{R['QOFF']}, s[{SRD_O}:{SRD_O+3}], 0 offen offset:32")
    if o['stamps']:
        e("s_mov_b64 exec, -1")
        e("s_waitcnt vmcnt(0)")
        e("s_memtime s[66:67]"); e("s_memrealtime s[78:79]"); e("s_waitcnt lgkmcnt(0)")
        e("s_mov_b32 s72, s68"); e("s_mov_b32 s73, s69"); e("s_mov_b32 s74, %d"%(64 if o['dbg'] else 0x100000)); e("s_mov_b32 s75, 0x20000")
        if o['dbg']:
            e("s_sub_u32 s80, s48, s60"); e("s_sub_u32 s81, s52, s60"); e("s_sub_u32 s82, s62, s60"); e("s_sub_u32 s83, s78, s76")
            e("s_mov_b32 s70, 4096")
            e("s_cmp_eq_u32 s2, 0"); e("s_cselect_b32 s70, 0, s70")
            e("s_cmp_eq_u32 s2, 133"); e("s_cselect_b32 s70, 32, s70")
            e(f"s_and_b32 s84, s{S_W}, 3"); e("s_cmp_eq_u32 s84, 0"); e("s_cselect_b32 s70, s70, 4096")
            e(f"s_lshl_b32 s84, s{S_W}, 2"); e("s_add_u32 s70, s70, s84")
            e("v_mov_b32 v1, s70")
            e("v_mov_b32 v4, s80"); e("v_mov_b32 v5, s81"); e("v_mov_b32 v6, s82"); e("v_mov_b32 v7, s83")
            e("s_mov_b64 exec, 1")
            e("buffer_store_dwordx4 v[4:7], v1, s[72:75], 0 offen")
            e("s_endpgm")
        e("s_lshl_b32 s70, s2, 3"); e(f"s_add_u32 s70, s70, s{S_W}"); e("s_lshl_b32 s70, s70, 7")
        e("v_mov_b32 v1, s70")
        e("v_mov_b32 v4, s60"); e("v_mov_b32 v5, s62"); e("v_mov_b32 v6, s64"); e("v_mov_b32 v7, s66")
        e("s_mov_b64 exec, 1")
        e("buffer_store_dwordx4 v[4:7], v1, s[72:75], 0 offen")
        e("v_mov_b32 v4, s76"); e("v_mov_b32 v5, s78"); e("v_mov_b32 v6, s77"); e("v_mov_b32 v7, s79")
        e("buffer_store_dwordx4 v[4:7], v1, s[72:75], 0 offen offset:16")
        for i in range(0,len(clkregs),2):
            a=clkregs[i]; b=clkregs[i+1] if i+1<len(clkregs) else a
            e(f"v_mov_b32 v4, s{a}"); e(f"v_mov_b32 v5, s{a+2}"); e(f"v_mov_b32 v6, s{b}"); e(f"v_mov_b32 v7, s{b+2}")
            e(f"buffer_store_dwordx4 v[4:7], v1, s[72:75], 0 offen offset:{32+8*i}")
    st.lab("L_end")
    e("s_endpgm")
    if not o['nofallback']:
        st.lab("L_fallback")
        S0=R['S']; PB=S0+32
        e("s_mov_b32 s46, 1")
        e(f"v_mov_b32 v{FK1}, v{R['K1A']}")
        e(f"v_mov_b32 v{FK2}, v{R['K2A']}")
        e(f"v_mov_b32 v{R['VE']}, v{VE0}")
        e(f"v_mov_b32 v{R['VO']}, v{VO0}")
        e(f"v_lshrrev_b32 v14, {int(math.log2(NP))}, v{R['VS']}")
        for i in range(32): e(f"v_mov_b32 v{R['O']+i}, 0")
        e(f"v_mov_b32 v{MX}, 0xff7fffff")
        e("s_mov_b32 s47, 32")
        st.lab("L_fb_loop")
        e(f"ds_read_b32 v{R['K2']}, v{FK2}")
        e(f"ds_read_b128 {rng(R['K1a'],4)}, v{FK1}")
        e(f"ds_read_b128 {rng(R['K1b'],4)}, v{FK1} offset:1024")
        for g in range(4):
            for rho in range(2):
                a=R['VE'] if g%2==0 else R['VO']
                e(f"ds_read_b64_tr_b16 {rng(Vreg(g)+2*rho,2)}, v{a} offset:{(g//2)*1152+rho*576}")
        e("s_waitcnt lgkmcnt(0)")
        e(f"v_mfma_f32_32x32x4_2b_bf16 {rng(S0,32)}, {rng(R['K2'],2)}, {rng(Q2,2)}, 0")
        e("s_nop 15"); e("s_nop 3")
        e(f"v_mfma_f32_32x32x16_bf16 {rng(S0,16)}, {rng(R['K1a'],4)}, {rng(Q1,4)}, {rng(S0,16)}")
        e(f"v_mfma_f32_32x32x16_bf16 {rng(S0+16,16)}, {rng(R['K1b'],4)}, {rng(Q1,4)}, {rng(S0+16,16)}")
        e("s_nop 15")
        e(f"v_max3_f32 v{T0}, v{S0}, v{S0+1}, v{MX}")
        for i in range(1,16): e(f"v_max3_f32 v{T0}, v{S0+2*i}, v{S0+2*i+1}, v{T0}")
        e(f"v_mov_b32 v{T1}, v{T0}")
        e("s_nop 1")
        e(f"v_permlane32_swap_b32 v{T0}, v{T1}")
        e("s_nop 1")
        e(f"v_max_f32 v{T0}, v{T0}, v{T1}")
        e(f"v_sub_f32 v{T1}, v{MX}, v{T0}")
        e(f"v_exp_f32 v{T1}, v{T1}")
        e(f"v_mov_b32 v{MX}, v{T0}")
        for i in range(32): e(f"v_mul_f32 v{R['O']+i}, v{R['O']+i}, v{T1}")
        for i in range(32): e(f"v_sub_f32 v{S0+i}, v{S0+i}, v{MX}")
        for i in range(32): e(f"v_exp_f32 v{S0+i}, v{S0+i}")
        e("s_nop 0")
        for i in range(16): e(f"v_cvt_pk_bf16_f32 v{PB+i}, v{S0+2*i}, v{S0+2*i+1}")
        e("s_nop 1")
        for g in range(4):
            oo=Oreg(g)
            e(f"v_mfma_f32_32x32x16_bf16 {rng(oo,16)}, {rng(Vreg(g),4)}, {rng(PB+4*g,4)}, {rng(oo,16)}")
        e(f"v_add_u32 v{FK1}, 0x800, v{FK1}")
        e(f"v_add_u32 v{FK2}, 0x100, v{FK2}")
        e(f"v_add_u32 v{R['VE']}, v{R['VE']}, v14")
        e(f"v_add_u32 v{R['VO']}, v{R['VO']}, v14")
        e("s_nop 15")
        e("s_sub_u32 s47, s47, 1")
        e("s_cmp_lg_u32 s47, 0")
        e("s_cbranch_scc1 L_fb_loop")
        e("s_branch L_final")
    return st

PATS={
 'd':[['E0','E1','c3','E2','E3','PV','va','vb','C0','E4','E5','C1','X','k','H','E6','E7','C2']]*4,
 'b':[['E0','c3','E1','E2','PV','va','E3','vb','C0','E4','E5','X','k','H','C1','E6','E7','C2']]*4,
}
def write(path,**kw):
    kw.setdefault('pats',PATS['d'])
    st=build(**kw)
    d=dict(kn=KN,lds=LDS_BYTES,nv=NV)
    open(path,'w').write(HEADER%d+st.text()+FOOTER%d)
if __name__=="__main__":
    import argparse
    ap=argparse.ArgumentParser()
    ap.add_argument('out'); ap.add_argument('--opts',default='{}')
    a=ap.parse_args()
    kw=eval(a.opts)
    if isinstance(kw.get('pats'),str): kw['pats']=PATS[kw['pats']]
    write(a.out,**kw)
```
